```python
import torch

def _softmax(x, axis=-1):
    return torch.softmax(x, dim=axis)
def _gelu(x):
    return torch.nn.functional.gelu(x, approximate="tanh")
def _silu(x):
    return torch.nn.functional.silu(x)
def _sigmoid(x):
    return torch.sigmoid(x)
def _layernorm(x, axis=-1, eps=1e-5):
    m = x.mean(dim=axis, keepdim=True)
    v = x.var(dim=axis, keepdim=True, unbiased=False)
    return (x - m) / torch.sqrt(v + eps)
def _scatter_add(tgt, idx, src, axis=0):
    return tgt.clone().index_add_(axis, idx, src)
def _segment_sum(src, seg, n):
    out = torch.zeros((n,) + src.shape[1:], dtype=src.dtype)
    return out.index_add_(0, seg, src)
def _pad(x, pw):
    flat = tuple(v for pair in reversed(pw) for v in pair)
    return torch.nn.functional.pad(x, flat)

kernel_name = 'standalone__modern_conv_block_replknet__vision'

def setup_inputs():

    _w = (lambda a: (lambda t: t.to(torch.bfloat16) if t.is_floating_point() else t)(torch.as_tensor(a)))
    H = W = 512
    C = 96
    K = 1
    return {
        "x": _w((lambda *s: torch.randn(*s, dtype=torch.bfloat16) * 0.05)(1, H, W, C)),
        "dw_large": _w((lambda *s: torch.randn(*s, dtype=torch.bfloat16) * 0.4)(K, K, C) * (1.0 / K)),
        "dw_small": _w((lambda *s: torch.randn(*s, dtype=torch.bfloat16) * 0.4)(5, 5, C) * 0.2),
        "w1": _w((lambda *s: torch.randn(*s, dtype=torch.bfloat16) * 0.4)(C, 4 * C) * (C ** -0.5)),
        "w2": _w((lambda *s: torch.randn(*s, dtype=torch.bfloat16) * 0.1)(4 * C, C) * ((4 * C) ** -0.5)),
    }

def reference(x, dw_large, dw_small, w1, w2):
    B, H, W, C = x.shape
    Kl = dw_large.shape[0]
    pl = (Kl - 1) // 2
    xpl = _pad(x, ((0,0),(pl,pl),(pl,pl),(0,0)))
    out = torch.zeros_like(x)
    for i in range(Kl):
        for j in range(Kl):
            out = out + xpl[:, i:i+H, j:j+W, :] * dw_large[i, j][None, None, None, :]
    Ks = dw_small.shape[0]
    ps = (Ks - 1) // 2
    xps = _pad(x, ((0,0),(ps,ps),(ps,ps),(0,0)))
    for i in range(Ks):
        for j in range(Ks):
            out = out + xps[:, i:i+H, j:j+W, :] * dw_small[i, j][None, None, None, :]
    h = _layernorm(out, axis=-1)
    h = _gelu(torch.einsum('bhwc,ce->bhwe', h, w1))
    h = torch.einsum('bhwe,ec->bhwc', h, w2)
    return x + h
```

```python
import re
class Ins:
    __slots__=("text","kind","w","r","passes","sdwa","cread","states","store128")
    def __init__(s,text,kind,w=(),r=(),passes=0,sdwa=False,cread=(),states=1,store128=()):
        s.text=text; s.kind=kind; s.w=set(w); s.r=set(r); s.passes=passes; s.sdwa=sdwa
        s.cread=set(cread); s.states=states; s.store128=set(store128)
def V(n,c=1): return [("v",n+i) for i in range(c)]
def S(n,c=1): return [("s",n+i) for i in range(c)]
def vr(n,c=1): return f"v{n}" if c==1 else f"v[{n}:{n+c-1}]"
def sr(n,c=1): return f"s{n}" if c==1 else f"s[{n}:{n+c-1}]"
def regs_of(op):
    op=op.strip().lstrip("-").strip("|")
    m=re.fullmatch(r"([vs])(\d+)",op)
    if m: return [(m.group(1),int(m.group(2)))]
    m=re.fullmatch(r"([vs])\[(\d+):(\d+)\]",op)
    if m: return [(m.group(1),i) for i in range(int(m.group(2)),int(m.group(3))+1)]
    if op in("vcc",): return [("s","vcc")]
    if op in("m0",): return [("s","m0")]
    if op in("exec",): return [("s","exec")]
    return []
TRANS=("v_exp_","v_rcp_","v_rsq_","v_log_","v_sqrt_","v_sin_","v_cos_")
def valu(text, rmw=False):
    mn,rest=text.split(None,1)
    parts=[]; depth=0; cur=""
    for ch in rest:
        if ch=="[": depth+=1
        if ch=="]": depth-=1
        if ch=="," and depth==0: parts.append(cur); cur=""
        else: cur+=ch
    parts.append(cur)
    parts=[p.strip().split()[0] if p.strip() else "" for p in parts]
    w=regs_of(parts[0]); r=[]
    for p in parts[1:]: r+=regs_of(p)
    kind="valu"
    if mn.startswith(TRANS): kind="trans"
    if mn.startswith("v_dot2"): kind="dot"
    if mn.startswith("v_permlane"): kind="perm"; w=w+regs_of(parts[1]); r=r+regs_of(parts[0])
    if mn.startswith("v_readfirstlane") or mn.startswith("v_readlane"): kind="rdlane"
    sdwa=("dst_sel:WORD" in text) or ("mixhi" in mn) or ("mixlo" in mn)
    if rmw or "UNUSED_PRESERVE" in text or mn.startswith("v_fmac") or mn.startswith("v_dot2c") or "mixhi" in mn or "mixlo" in mn: r=r+w
    if mn.startswith("v_cndmask") and len(parts)==3: r=r+[("s","vcc")]
    return Ins(text,kind,w,r,sdwa=sdwa)
def mfma(op,d,a,b,c,nd,na=4,nb=4,passes=8):
    cs = "0" if c is None else vr(c,nd)
    t=f"{op} {vr(d,nd)}, {vr(a,na)}, {vr(b,nb)}, {cs}"
    cr=[] if c is None else V(c,nd)
    return Ins(t,"mfma",V(d,nd),V(a,na)+V(b,nb)+cr,passes=passes,cread=cr)
def smfmac(op,d,a,b,idx,nd,na,nb,passes=4):
    t=f"{op} {vr(d,nd)}, {vr(a,na)}, {vr(b,nb)}, {vr(idx)}"
    return Ins(t,"mfma",V(d,nd),V(a,na)+V(b,nb)+V(idx)+V(d,nd),passes=passes,cread=V(d,nd))
def dsr(op,d,nd,addr,off=0):
    assert 0<=off<65536,off
    return Ins(f"{op} {vr(d,nd)}, {vr(addr)} offset:{off}","ds",V(d,nd),V(addr))
def dsw(op,addr,s,ns,off=0):
    assert 0<=off<65536,off
    return Ins(f"{op} {vr(addr)}, {vr(s,ns)} offset:{off}","ds",(),V(addr)+V(s,ns))
def salu(text):
    mn,*rest=text.split(None,1)
    w=[];r=[]
    if rest:
        parts=[p.strip() for p in re.split(r",(?![^\[]*\])",rest[0])]
        if not mn.startswith("s_cmp") and not mn.startswith("s_cbranch") and not mn.startswith("s_setprio"):
            w=regs_of(parts[0]); parts=parts[1:]
        for p in parts: r+=regs_of(p)
    return Ins(text,"salu",w,r)
def nop(n): return Ins(f"s_nop {n}","nop",states=n+1)
def wait(vm=None,lgkm=None):
    t="s_waitcnt"
    if vm is not None: t+=f" vmcnt({vm})"
    if lgkm is not None: t+=f" lgkmcnt({lgkm})"
    return Ins(t,"wait")
def barrier(): return Ins("s_barrier","bar")
def label(n): return Ins(f"{n}:","label",states=0)
def comment(t): return Ins(f"; {t}","label",states=0)
def bufload(op,d,nd,voff,srd,soff,off=0,extra=""):
    so = soff if isinstance(soff,str) else (sr(soff))
    t=f"{op} {vr(d,nd)}, {vr(voff)}, {sr(srd,4)}, {so} offen offset:{off}{extra}"
    return Ins(t,"vmem",V(d,nd),V(voff)+S(srd,4)+regs_of(so))
def bufdma(voff,srd,soff,off=0,extra=""):
    so = soff if isinstance(soff,str) else (sr(soff))
    t=f"buffer_load_dwordx4 {vr(voff)}, {sr(srd,4)}, {so} offen offset:{off}{extra} lds"
    return Ins(t,"dma",(),V(voff)+S(srd,4)+regs_of(so)+[("s","m0")])
def bufstore(op,s,ns,voff,srd,soff,off=0,extra=""):
    so = soff if isinstance(soff,str) else (sr(soff))
    t=f"{op} {vr(s,ns)}, {vr(voff)}, {sr(srd,4)}, {so} offen offset:{off}{extra}"
    return Ins(t,"vmem",(),V(s,ns)+V(voff)+S(srd,4)+regs_of(so),store128=V(s,ns) if ns>=3 else ())
VALUK=("valu","trans","dot","perm","rdlane")
def need(p,c):
    n=0
    pv = p.kind in VALUK
    cv = c.kind in VALUK
    vw={x for x in p.w if x[0]=="v"}; sw={x for x in p.w if x[0]=="s"}
    if pv and p.kind!="dot" and c.kind=="mfma" and vw & c.r: n=max(n,2)
    if p.kind=="dot":
        if vw & (c.r|c.w):
            same = c.kind=="dot" and c.text.split()[0]==p.text.split()[0]
            if same:
                ops=c.text.split(None,1)[1].split(",")
                ab=set(regs_of(ops[1])+regs_of(ops[2].split()[0]))
                if vw & ab: n=max(n,3)
            else: n=max(n,3)
    if p.kind=="mfma":
        T={2:(5,4),4:(8,6),8:(12,10),16:(20,18)}[p.passes]
        if c.kind=="mfma":
            ab=c.r-c.cread
            if vw & ab: n=max(n,T[0])
            if vw & c.cread:
                if not (c.cread==vw and c.passes==p.passes): n=max(n,T[1])
                elif p.passes==2: n=max(n,2)
            elif vw & c.w:
                n=max(n,T[1])
        elif (cv or c.kind in("ds","vmem","dma")) and vw & (c.r|c.w): n=max(n,T[0])
        if cv and p.cread & c.w: n=max(n,{2:1,4:3,8:7,16:15}[p.passes])
    if p.kind=="trans" and cv and c.kind!="trans" and vw & c.r: n=max(n,1)
    if p.kind=="trans" and c.kind in("ds","vmem") and vw & c.r: n=max(n,1)
    if pv and p.sdwa and cv and vw & (c.r|c.w): n=max(n,1)
    if pv and c.kind=="perm" and vw & c.r: n=max(n,2)
    if pv and c.kind=="rdlane" and vw & c.r: n=max(n,1)
    if pv and sw and c.kind in("vmem","dma") and sw & c.r: n=max(n,5)
    if pv and sw and cv and sw & c.r: n=max(n,2)
    if pv and sw and c.kind=="salu" and sw & c.r: n=max(n,1)
    if p.kind=="salu" and ("s","m0") in p.w and c.kind=="dma": n=max(n,1)
    if p.store128 and (cv or c.kind in("ds","vmem","mfma")) and p.store128 & c.w: n=max(n,2)
    if pv and "dpp" in c.text and vw & c.r: n=max(n,2)
    return n
def check(seq, name=""):
    errs=0
    for i,c in enumerate(seq):
        if c.kind=="label": continue
        d=0
        for j in range(i-1,max(-1,i-40),-1):
            p=seq[j]
            n=need(p,c)
            if n>d:
                print(f"HAZARD[{name}] need {n} have {d}:\n   {p.text}\n   {c.text}"); errs+=1
            d+=p.states
            if d>=21: break
    return errs
def autopad(seq):
    out=[]
    for c in seq:
        if c.kind!="label":
            d=0; short=0
            for p in reversed(out[-40:]):
                n=need(p,c)
                if n>d: short=max(short,n-d)
                d+=p.states
                if d>=21: break
            while short>0:
                k=min(short,16); out.append(nop(k-1)); short-=k
        out.append(c)
    return out
def text(seq): return "\n".join(("" if i.kind=="label" else "    ")+i.text for i in seq)+"\n"
```

```python
import sys, math, struct
import numpy as np
from asmlib import *
NAME="standalone__modern_conv_block_replknet__vision"
OPT=dict(stamp=False, prio=0, endfrac=0.80)
def f32bits(x): return struct.unpack("<I",struct.pack("<f",x))[0]
def bf16(x):
    u=f32bits(x); return (u+0x7fff+((u>>16)&1))>>16
def bf16val(b): return struct.unpack("<f",struct.pack("<I",b<<16))[0]
C0=2*math.sqrt(2/math.pi)*math.log2(math.e)
KAP0=(C0*0.044715)**(1/3)
A16=np.float16(C0/KAP0); A16b=int(np.array([A16]).view(np.uint16)[0])
KAP=C0/float(A16)
CINV=1.0/KAP
CHI=bf16(CINV); CLO=bf16(CINV-bf16val(CHI))
XBYTES=512*512*192; ROWB=98304
BLK=15424; ROWP=3840
W2OFF=5*BLK; RING=W2OFF+73728; LDS=RING+2*6144
CA=4; CIDX=40
BQ=41; YW=44; STMP=46; XC=47; TRA=49; W2A=50; XV=52; W1V=54; STV=55
ID0=56; ID1=60
Y=64; XA=88; XB=96; T=104; BB1=80; PK=64
ACC1=112; ACC2=128; SW1=176; SW2=200; BB0=200; OUT=232
SX=4; SO=8; SW=12; ST=16
sPASS=20; sXROW=21; sOUT=22; sWV=23; sA16=24; sONE=25; sM0W=26; sPX=28
sC96=40; sEPS=41; sKAP=42; sSOFF=43; sOUT2=65; sIDX=64
MF32B="v_mfma_f32_32x32x16_bf16"; MF32H="v_mfma_f32_32x32x16_f16"; MF16B="v_mfma_f32_16x16x32_bf16"; SM64="v_smfmac_f32_16x16x64_bf16"
def stamp():
    if not OPT["stamp"]: return []
    return [Ins("s_memtime s[66:67]","smem",S(66,2)), wait(lgkm=0), salu(f"s_mov_b32 m0, s{sIDX}"), nop(3),
            Ins(f"v_writelane_b32 v{STMP}, s66, m0","other"), salu(f"s_add_u32 s{sIDX}, s{sIDX}, 1")]
def trreads(k,buf): return [dsr("ds_read_b64_tr_b16",SW1+4*k+2*hf,2,TRA,buf*6144+k*1024+hf*256) for hf in range(2)]

def startup():
    o=[]; a=o.append
    v=lambda t:a(valu(t)); s=lambda t:a(salu(t))
    s("s_cmp_ge_u32 s2, 256"); a(Ins("s_cbranch_scc1 L_exit","salu"))
    if OPT["stamp"]:
        s(f"s_mov_b32 s{sIDX}, 0"); v(f"v_mov_b32 v{STMP}, 0"); o+=stamp()
        a(Ins("s_memrealtime s[72:73]","smem",S(72,2)))
        a(Ins("s_load_dwordx2 s[68:69], s[0:1], 56","smem",S(68,2)))
    a(Ins("s_load_dwordx4 s[44:47], s[0:1], 0","smem",S(44,4)))
    a(Ins("s_load_dwordx4 s[48:51], s[0:1], 16","smem",S(48,4)))
    a(Ins("s_load_dwordx4 s[52:55], s[0:1], 32","smem",S(52,4)))
    v("v_lshrrev_b32 v1, 6, v0")
    v("v_and_b32 v0, 63, v0")
    v(f"v_readfirstlane_b32 s{sWV}, v1")
    s(f"s_and_b32 s30, s2, 7"); s(f"s_lshr_b32 s31, s2, 3"); s(f"s_lshl_b32 s31, s31, 4"); s(f"s_lshl_b32 s30, s30, 6")
    s(f"s_mul_i32 s{sOUT}, s30, {ROWB}")
    s(f"s_sub_u32 s{sXROW}, s{sOUT}, {2*ROWB}")
    v("v_lshlrev_b32 v3, 4, v0")
    s(f"s_add_u32 s36, s{sWV}, 8"); s("s_min_u32 s36, s36, 14")
    s(f"s_lshl_b32 s{sPX}, s{sWV}, 10"); s(f"s_lshl_b32 s{sPX+1}, s36, 10")
    s("s_mov_b32 s37, 0x80000000"); s("s_sub_u32 s38, s31, 2")
    for pi in range(2):
        s(f"s_lshr_b32 s39, s{sPX+pi}, 4")
        v("v_add_u32 v1, s39, v0")
        v("v_mul_u32_u24 v2, 2185, v1"); v("v_lshrrev_b32 v2, 19, v2")
        v("v_mul_u32_u24 v240, 240, v2"); v("v_sub_u32 v1, v1, v240")
        v("v_mul_u32_u24 v240, 171, v1"); v("v_lshrrev_b32 v240, 11, v240")
        v("v_mul_u32_u24 v241, 12, v240"); v("v_sub_u32 v1, v1, v241")
        v("v_bfe_u32 v241, v240, 2, 2"); v("v_xor_b32 v1, v1, v241")
        v("v_add_u32 v240, s38, v240")
        v("v_cmp_gt_u32 vcc, 512, v240")
        v(f"v_mul_u32_u24 v2, {ROWB}, v2"); v("v_mul_u32_u24 v240, 192, v240")
        v("v_lshl_add_u32 v1, v1, 4, v2"); v("v_add_u32 v1, v1, v240")
        v("v_mov_b32 v2, s37")
        v(f"v_cndmask_b32 v{XV+pi}, v2, v1, vcc")
        v(f"v_add_u32 v{242+pi}, s{sXROW}, v{XV+pi}")
    s(f"s_sub_u32 s32, s{sWV}, 6"); s(f"s_cmp_ge_u32 s{sWV}, 6"); s(f"s_cselect_b32 s32, s32, s{sWV}")
    v("v_lshrrev_b32 v1, 2, v0"); s("s_lshl_b32 s33, s32, 4"); v("v_add_u32 v1, s33, v1")
    v("v_mul_u32_u24 v1, 768, v1"); v("v_and_b32 v2, 3, v0"); v(f"v_lshl_add_u32 v{W1V}, v2, 4, v1")
    s("s_lshl_b32 s33, s32, 10")
    s(f"s_add_u32 s{sM0W}, s33, {RING}"); s(f"s_add_u32 s{sM0W+1}, s33, {RING+6144}")
    a(wait(lgkm=0))
    for dst,src,n in ((SX,44,XBYTES),(ST,52,73728),(SW,50,73728),(56,48,4800),(60,46,192),(SO,54,0)):
        s(f"s_mov_b32 s{dst}, s{src}"); s(f"s_and_b32 s{dst+1}, s{src+1}, 0xffff"); s(f"s_mov_b32 s{dst+2}, {n}"); s(f"s_mov_b32 s{dst+3}, 0x20000")
    s("s_cmp_eq_u32 s32, 5")
    for k in range(3): s(f"s_cselect_b32 s{56+k}, s{60+k}, s{56+k}")
    s("s_cselect_b32 s33, 0, s33")
    s(f"s_mov_b32 m0, s{sM0W+1}"); a(nop(0)); a(bufdma(3,56,33,0))
    s(f"s_mov_b32 m0, s{sM0W}"); a(nop(0)); a(bufdma(W1V,SW,"0",0))
    s(f"s_mul_i32 s34, s{sWV}, 9216"); s(f"s_add_u32 s35, s34, {W2OFF}")
    for k in range(9):
        if k%4==0:
            s(f"s_add_u32 m0, s35, {1024*k}"); s(f"s_add_u32 s{sSOFF}, s34, {1024*k}")
        a(bufdma(3,ST,sSOFF,1024*(k%4)))
    for pi in range(2):
        for b in range(5):
            s(f"s_add_u32 m0, s{sPX+pi}, {b*BLK}")
            if b==0:
                a(nop(0)); a(bufdma(242+pi,SX,"0",0))
            else:
                s(f"s_add_u32 s{sSOFF}, s{sXROW}, {4*b*ROWB}"); a(bufdma(XV+pi,SX,sSOFF,0))
    s(f"s_add_u32 s{sXROW}, s{sXROW}, {16*ROWB}")
    DWB=RING+6144
    v("v_bfe_u32 v240, v0, 2, 2"); v("v_and_b32 v241, 3, v0"); v("v_lshrrev_b32 v242, 4, v0")
    s(f"s_mul_i32 s36, s{sWV}, 24"); s(f"s_add_u32 s36, s36, {DWB}")
    v("v_lshlrev_b32 v243, 1, v241"); v("v_add_u32 v243, s36, v243")
    v("v_and_b32 v1, 1, v242"); v("v_lshlrev_b32 v1, 2, v1"); v("v_sub_u32 v1, v1, v240")
    v("v_lshrrev_b32 v2, 1, v242"); v("v_mul_u32_u24 v2, 5, v2")
    v(f"v_mov_b32 v254, {DWB+6144+4096}")
    for g in range(4):
        v(f"v_add_u32 v252, {g}, v1")
        v("v_cmp_gt_u32 vcc, 5, v252")
        v("v_add_u32 v253, v252, v2")
        v("v_mul_u32_u24 v255, 192, v253"); v("v_add_u32 v255, v255, v243")
        v(f"v_cndmask_b32 v{244+g}, v254, v255, vcc")
        v("v_cmp_eq_u32 vcc, 2, v253")
        v("v_mov_b32 v255, 0xffff0000")
        v(f"v_cndmask_b32 v{248+g}, 0, v255, vcc")
        v("v_cmp_eq_u32 vcc, 2, v252")
        v(f"v_cndmask_b32 v{248+g}, 0, v{248+g}, vcc")
    v("v_lshlrev_b32 v1, 1, v242"); v("v_sub_u32 v1, v1, v240")
    for e in range(2):
        v(f"v_add_u32 v252, {e}, v1")
        v("v_cmp_gt_u32 vcc, 5, v252")
        v("v_add_u32 v253, 20, v252"); v("v_mul_u32_u24 v255, 192, v253"); v("v_add_u32 v255, v255, v243")
        v(f"v_cndmask_b32 v{224+e}, v254, v255, vcc")
    s(f"s_mov_b32 s{sA16}, {hex(A16b|(A16b<<16))}"); s(f"s_mov_b32 s{sONE}, 0x3f803f80")
    s(f"s_mov_b32 s{sC96}, {hex(f32bits(1/96))}"); s(f"s_mov_b32 s{sEPS}, {hex(f32bits(1e-5))}"); s(f"s_mov_b32 s{sKAP}, {hex(f32bits(KAP))}")
    s(f"s_mov_b32 s{sPASS}, 0"); s(f"s_mov_b32 s{sOUT2}, 0")
    v(f"v_mul_u32_u24 v{CIDX}, 0x5555, v241")
    v("v_and_b32 v1, 31, v0"); v("v_lshrrev_b32 v2, 3, v1"); v("v_and_b32 v252, 3, v1"); v("v_lshl_add_u32 v2, v2, 2, v252")
    v("v_and_b32 v252, 1, v2"); v("v_lshlrev_b32 v252, 4, v252"); v("v_mov_b32 v253, 0xffff"); v("v_lshlrev_b32 v252, v252, v253")
    v("v_lshrrev_b32 v2, 1, v2"); v("v_lshrrev_b32 v253, 5, v0"); v("v_lshlrev_b32 v253, 2, v253"); v("v_sub_u32 v2, v2, v253")
    v("v_bfe_u32 v253, v1, 2, 1"); v("v_lshl_add_u32 v2, v253, 4, v2")
    for k in range(2):
        for rho in range(4):
            v(f"v_cmp_eq_u32 vcc, {16*k+rho}, v2")
            v(f"v_cndmask_b32 v{ID0+4*k+rho}, 0, v252, vcc")
    HI=208; LO=216
    s(f"s_mov_b32 s38, {hex(CHI|(CHI<<16))}"); s(f"s_mov_b32 s39, {hex(CLO|(CLO<<16))}")
    for k in range(8):
        v(f"v_and_b32 v{HI+k}, s38, v{ID0+k}"); v(f"v_and_b32 v{LO+k}, s39, v{ID0+k}"); v(f"v_and_b32 v{ID0+k}, s{sONE}, v{ID0+k}")
    v(f"v_mul_u32_u24 v1, {BLK}, v240")
    v("v_lshlrev_b32 v2, 2, v241"); v("v_lshl_add_u32 v2, v242, 1, v2")
    v("v_mul_u32_u24 v2, 192, v2"); v("v_add_u32 v1, v1, v2")
    v("v_lshrrev_b32 v2, 1, v242"); v("v_add_u32 v2, v2, v241"); v("v_and_b32 v2, 3, v2")
    v("v_mul_u32_u24 v252, 192, v242"); v(f"v_sub_u32 v{YW}, 384, v252")
    for qi in range(3):
        s(f"s_mul_i32 s36, s{sWV}, 3"); s(f"s_add_u32 s36, s36, {qi}")
        s("s_lshr_b32 s38, s36, 1"); s("s_and_b32 s36, s36, 1"); s("s_lshl_b32 s36, s36, 3")
        v("v_xor_b32 v253, s38, v2"); v("v_lshl_add_u32 v253, v253, 4, v1"); v(f"v_add_u32 v{BQ+qi}, s36, v253")
    s(f"s_lshl_b32 s36, s{sWV}, 10"); s("s_add_u32 s36, s36, s31")
    v("v_and_b32 v2, 15, v0"); v("v_add_u32 v253, s36, v2"); v("v_mul_u32_u24 v253, 192, v253"); v(f"v_lshl_add_u32 v{STV}, v242, 4, v253")
    v("v_bfe_u32 v1, v0, 4, 1"); s(f"s_lshl_b32 s36, s{sWV}, 1"); s("s_add_u32 s36, s36, 2"); v("v_add_u32 v1, s36, v1")
    v("v_lshrrev_b32 v252, 5, v0")
    v("v_add_u32 v2, 2, v2")
    v("v_lshrrev_b32 v253, 2, v1"); v(f"v_mul_u32_u24 v253, {BLK}, v253")
    v("v_and_b32 v1, 3, v1"); v(f"v_mul_u32_u24 v1, {ROWP}, v1"); v("v_add_u32 v253, v253, v1")
    v("v_mul_u32_u24 v1, 192, v2"); v("v_add_u32 v253, v253, v1")
    v("v_bfe_u32 v2, v2, 2, 2")
    for b in range(2):
        v(f"v_add_u32 v1, {2*b}, v252"); v("v_xor_b32 v1, v1, v2"); v(f"v_lshl_add_u32 v{XC+b}, v1, 4, v253")
    v("v_lshrrev_b32 v1, 5, v0"); v("v_lshlrev_b32 v1, 3, v1"); v("v_add_u32 v1, v1, v240"); v("v_lshlrev_b32 v1, 6, v1")
    v("v_bfe_u32 v2, v0, 4, 1"); v("v_lshl_add_u32 v1, v2, 5, v1"); v("v_lshl_add_u32 v1, v241, 3, v1")
    v(f"v_add_u32 v{TRA}, {RING}, v1")
    v(f"v_add_u32 v{W2A}, {W2OFF}, v3"); v(f"v_add_u32 v{W2A+1}, {W2OFF+36864}, v3")
    s(f"s_mul_i32 s34, s{sWV}, 6144")
    s(f"s_add_u32 s35, s{sWV}, 8"); s("s_sub_u32 s36, s35, 12"); s("s_cmp_ge_u32 s35, 12"); s("s_cselect_b32 s35, s36, s35"); s("s_mul_i32 s35, s35, 6144")
    v("v_and_b32 v1, 31, v0"); v("v_mul_u32_u24 v1, 192, v1"); v("v_lshl_add_u32 v1, v252, 4, v1"); v(f"v_add_u32 v1, {W2OFF}, v1")
    v("v_add_u32 v2, s35, v1"); v("v_add_u32 v1, s34, v1")
    o+=stamp()
    a(wait(vm=10)); a(barrier())
    o+=stamp()
    for k in range(6): a(dsr("ds_read_b128",64+4*k,4,1,32*k))
    for k in range(6): a(dsr("ds_read_b128",88+4*k,4,2,32*k))
    a(wait(lgkm=2))
    for k in range(6): o+=trreads(k,0)
    for qi in range(3):
        base=CA+12*qi
        a(wait(lgkm=4))
        for g in range(4): a(dsr("ds_read_u16",base+4+g,1,244+g,8*qi))
        for g in range(4): a(dsr("ds_read_u16",base+8+g,1,244+g,8*qi+1920))
        for e in range(2): a(dsr("ds_read_u16",232+2*qi+e,1,224+e,8*qi))
        a(dsr("ds_read_u16",226+qi,1,243,8*qi+5120))
    a(wait(lgkm=0)); a(barrier())
    s(f"s_sub_u32 m0, s{sM0W+1}, 64"); a(nop(0)); a(bufdma(W1V,SW,"0",64))
    s(f"s_sub_u32 m0, s{sM0W}, 128"); a(nop(0)); a(bufdma(W1V,SW,"0",128))
    for jj,(src,soff) in enumerate(((64,34),(88,35))):
        v(f"v_add_u32 v1, s{soff}, v{W2A}")
        for t in range(3):
            acc=128+16*t
            a(mfma(MF32B,acc,src+8*t,HI,None,16)); a(mfma(MF32B,acc,src+8*t,LO,acc,16))
            a(mfma(MF32B,acc,src+8*t+4,HI+4,acc,16)); a(mfma(MF32B,acc,src+8*t+4,LO+4,acc,16))
        for t in range(3):
            acc=128+16*t; d=112+8*(t&1)
            for i in range(8): v(f"v_cvt_pk_f16_f32 v{d+i}, v{acc+2*i}, v{acc+2*i+1}")
            a(dsw("ds_write_b128",1,d,4,2048*t)); a(dsw("ds_write_b128",1,d+4,4,2048*t+1024))
            if t>=1: a(wait(lgkm=2))
        a(wait(lgkm=0))
    v("v_and_b32 v1, 1, v241"); v("v_lshlrev_b32 v1, 4, v1")
    v("v_cmp_gt_u32 vcc, 2, v241"); v("v_cndmask_b32 v2, 0, -1, vcc"); v("v_not_b32 v3, v2")
    for qi in range(3):
        base=CA+12*qi
        for e in range(2):
            v(f"v_lshlrev_b32 v252, v1, v{232+2*qi+e}")
            v(f"v_and_b32 v{base+2*e}, v252, v2"); v(f"v_and_b32 v{base+2*e+1}, v252, v3")
        v(f"v_lshlrev_b32 v252, 16, v{226+qi}")
        for g in range(4): v(f"v_and_or_b32 v{base+8+g}, v252, v{248+g}, v{base+8+g}")
    o+=stamp()
    a(wait(vm=0))
    o+=stamp()
    return o

def boff(beta,e): return BLK*(beta>>2)+ROWP*(beta&3)+192*e
def conv_phase():
    o=[]; a=o.append
    a(barrier())
    o+=stamp()
    XCR=XA
    for s_ in range(6): a(dsr("ds_read_b128",XCR+4*s_,4,XC+(s_&1),64*(s_>>1)))
    def breads(qi):
        bb=[BB0,BB1][qi&1]
        return [dsr("ds_read_b64",bb+4*beta+2*e,2,BQ+qi,boff(beta,e)) for beta in range(8) for e in range(2)]
    r0=breads(0)
    o+=r0[:8]
    a(salu(f"s_cmp_lt_u32 s{sPASS}, 3")); a(salu(f"s_cselect_b32 s{SX+2}, {XBYTES}, 0"))
    for qi in range(3): a(valu(f"v_add_u32 v{qi}, v{BQ+qi}, v{YW}"))
    a(wait(lgkm=8)); a(barrier())
    rest=r0[8:]
    for t in range(3):
        a(mfma(MF32B,ACC2+16*t,ID0,XCR+8*t,None,16)); o+=rest[:2]; rest=rest[2:]
        a(mfma(MF32B,ACC2+16*t,ID1,XCR+8*t+4,ACC2+16*t,16)); o+=rest[:1]; rest=rest[1:]
    assert not rest
    pend=[]
    def post(qi,G):
        p=PK+2*G
        return [valu(f"v_cvt_pk_bf16_f32 v{p}, v{ACC1+4*G}, v{ACC1+4*G+1}"), valu(f"v_cvt_pk_bf16_f32 v{p+1}, v{ACC1+4*G+2}, v{ACC1+4*G+3}"),
                dsw("ds_write_b64",qi,p,2,BLK*((G+2)>>2)+ROWP*((G+2)&3))]
    nw=0
    for qi in range(3):
        a(wait(lgkm=0 if qi==0 else 1))
        bb=[BB0,BB1][qi&1]; base=CA+12*qi
        nxt=breads(qi+1) if qi<2 else []
        for G in range(4):
            ms=[mfma(MF16B,ACC1+4*G,base,bb+4*(G+4),None,4,passes=4), smfmac(SM64,ACC1+4*G,base+4,bb+4*G,CIDX,4,4,8), smfmac(SM64,ACC1+4*G,base+8,bb+4*(G+2),CIDX,4,4,8)]
            for k,m in enumerate(ms):
                a(m)
                last=(G==3 and k==2)
                n=2 if G<2 else (1 if (G==2 or k<1) else 0)
                o+=nxt[:n]; nxt=nxt[n:]
                if k==2 and pend:
                    o+=pend.pop(0)
            pend.append(post(qi,G))
        assert not nxt
    while pend: o+=pend.pop(0)
    a(wait(lgkm=0)); o+=stamp(); a(barrier())
    o+=stamp()
    for s_ in range(6): a(dsr("ds_read_b128",Y+4*s_,4,XC+(s_&1),64*(s_>>1)))
    v=lambda t:a(valu(t))
    for s_ in range(6):
        a(wait(lgkm=5-s_))
        for i in range(4):
            r=Y+4*s_+i; first=(s_==0 and i==0)
            v(f"v_dot2_f32_bf16 v0, v{r}, s{sONE}, {'0' if first else 'v0'}")
            v(f"v_dot2_f32_bf16 v1, v{r}, v{r}, {'0' if first else 'v1'}")
    v("v_mov_b32 v2, v0"); v("v_mov_b32 v3, v1")
    v("v_permlane32_swap_b32 v2, v0"); v("v_permlane32_swap_b32 v3, v1")
    v("v_add_f32 v0, v2, v0"); v("v_add_f32 v1, v3, v1")
    v(f"v_mul_f32 v0, s{sC96}, v0")
    v(f"v_mov_b32 v2, s{sEPS}")
    v(f"v_fma_f32 v1, v1, s{sC96}, v2")
    v("v_fma_f32 v1, -v0, v0, v1")
    v("v_max_f32 v1, v1, v2")
    v("v_rsq_f32 v1, v1")
    v(f"v_mul_f32 v1, s{sKAP}, v1")
    v("v_cvt_pk_bf16_f32 v2, v1, 0")
    v("v_lshlrev_b32 v3, 16, v2")
    v("v_mul_f32 v0, -v0, v3")
    pend=[]
    for s_ in range(6):
        tb=XA+8*(s_%3)
        for i in range(4):
            v(f"v_dot2_f32_bf16 v{tb+2*i}, v{Y+4*s_+i}, v2, v0"); v(f"v_dot2_f32_bf16 v{tb+2*i+1}, v{Y+4*s_+i}, v3, v0")
        o+=pend
        pend=[valu(f"v_cvt_pk_bf16_f32 v{Y+4*s_+i}, v{tb+2*i}, v{tb+2*i+1}") for i in range(4)]
    o+=pend
    for k in range(6):
        a(mfma(MF32B,ACC1,SW1+4*k,Y+4*k,None if k==0 else ACC1,16))
        o+=trreads(k,1)
    a(wait(lgkm=0)); o+=stamp(); a(barrier())
    o+=stamp()
    return o

def gelu(X):
    L=[]
    L+=[f"v_cvt_pk_f16_f32 v{X+i}, v{ACC1+2*i}, v{ACC1+2*i+1}" for i in range(8)]
    L+=[f"v_pk_fma_f16 v{T+i}, v{X+i}, v{X+i}, s{sA16}" for i in range(8)]
    L+=[f"v_pk_mul_f16 v{T+i}, v{T+i}, v{X+i}" for i in range(8)]
    L+=[f"v_exp_f16_sdwa v{T+i}, -v{T+i} dst_sel:WORD_{h} dst_unused:UNUSED_PRESERVE src0_sel:WORD_{h}" for h in range(2) for i in range(8)]
    L+=[f"v_pk_add_f16 v{T+i}, v{T+i}, 1.0 op_sel_hi:[1,0]" for i in range(8)]
    L+=[f"v_rcp_f16_sdwa v{T+i}, v{T+i} dst_sel:WORD_{h} dst_unused:UNUSED_PRESERVE src0_sel:WORD_{h}" for h in range(2) for i in range(8)]
    L+=[f"v_pk_mul_f16 v{X+i}, v{T+i}, v{X+i}" for i in range(8)]
    return [valu(t) for t in L]
def w2read(j,k):
    off=j*6144+k*1024
    return dsr("ds_read_b128",SW2+4*k,4,W2A+(1 if j>=6 else 0),off-(36864 if j>=6 else 0))
def g2(j,k):
    X=[XA,XB][j&1]; t=k>>1; kap=k&1
    return mfma(MF32H,ACC2+16*t,SW2+4*k,X+4*kap,ACC2+16*t,16)
def ostore(i):
    return bufstore("buffer_store_dwordx4",OUT+4*i,4,STV,SO,sOUT2 if i&1 else sOUT,64*(i>>1))
def slot(j):
    X=[XA,XB][j&1]
    vl=gelu(X)
    dma=[]
    c=(j+3)%12
    dma.append(salu(f"s_sub_u32 m0, s{sM0W+(c&1)}, {64*c}") if c else salu(f"s_mov_b32 m0, s{sM0W}"))
    if j<10: dma.append(salu(f"s_add_u32 s{sSOFF}, s{sXROW}, {4*(j%5)*ROWB}"))
    else: dma.append(nop(0))
    dma.append(bufdma(W1V,SW,"0",64*c))
    dma2=[]; nyoung=0
    if j<10:
        dma2.append(salu(f"s_add_u32 m0, s{sPX+j//5}, {(j%5)*BLK}")); dma2.append(nop(0))
        dma2.append(bufdma(XV+j//5,SX,sSOFF,0)); nyoung+=1
    dma3=[]
    if 1<=j<=6: dma3.append(ostore(j-1)); nyoung+=1
    g1=[]
    if j<11:
        cn=(j+2)%12
        for k in range(6):
            f=trreads(k,cn&1)
            if j==0: f.append(w2read(0,k))
            g1.append([mfma(MF32B,ACC1,SW1+4*k,Y+4*k,None if k==0 else ACC1,16),f])
    g2s=[]
    if j>0:
        for k in range(6): g2s.append([g2(j-1,k),[w2read(j,k)]])
    out=[]
    if OPT["prio"]==1: out.append(salu("s_setprio 3"))
    if g2s:
        m,f=g2s.pop(0); out+=[m]+f+dma
        items=g1+g2s
        items[-3][1]=items[-3][1]+dma2; items[-2][1]=items[-2][1]+dma3
    else:
        out+=dma+dma2
        items=g1
    cost=[8 if x.kind=="trans" else 4 for x in vl]
    tot=sum(cost); start=32; span=tot*OPT["endfrac"]-start
    n=len(items); acc=0; k=0; pq=1
    for x,cst in zip(vl,cost):
        while k<n and acc>=start+span*k/max(1,n-1)-1e-9:
            out+=[items[k][0]]+items[k][1]; k+=1
            if OPT["prio"]==1 and pq<4 and acc>=tot*pq/4-40:
                out.append(salu(f"s_setprio {3-pq}")); pq+=1
        out.append(x); acc+=cst
    assert k==n
    if j<11:
        out.append(wait(vm=nyoung,lgkm=0))
        if j in (0,5,10): out+=stamp()
        out.append(barrier())
        if j in (0,5,10): out+=stamp()
    return out
def epilogue():
    o=[]; a=o.append
    a(wait(lgkm=0))
    pk=lambda t:[valu(f"v_cvt_pk_bf16_f32 v{OUT+8*t+i}, v{ACC2+16*t+2*i}, v{ACC2+16*t+2*i+1}") for i in range(8)]
    sw=lambda t:[valu(f"v_permlane16_swap_b32 v{OUT+8*t+i}, v{OUT+8*t+4+i}") for i in range(4)]
    for k in range(6): a(g2(11,k))
    a(salu(f"s_cmp_eq_u32 s{sPASS}, 0")); a(salu(f"s_cselect_b32 s30, 0, {16*ROWB}"))
    a(salu(f"s_add_u32 s{sOUT}, s{sOUT}, s30")); a(salu(f"s_add_u32 s{sOUT2}, s{sOUT}, {ROWB}"))
    a(salu(f"s_mov_b32 s{SO+2}, {XBYTES}"))
    a(salu(f"s_add_u32 s{sXROW}, s{sXROW}, {16*ROWB}"))
    a(salu(f"s_add_u32 s{sPASS}, s{sPASS}, 1"))
    o+=pk(0)+pk(1)+sw(0)+pk(2)+sw(1)+sw(2)
    o+=stamp()
    a(salu(f"s_cmp_ge_u32 s{sPASS}, 4")); a(Ins("s_cbranch_scc1 L_fin","salu"))
    a(wait(vm=0))
    a(Ins("s_branch L_loop","salu"))
    return o

def build():
    st=autopad(startup())
    body=[label("L_loop")]+conv_phase()
    for j in range(12): body+=[comment(f"slot {j}")]+slot(j)
    body+=epilogue()
    body=autopad(body)
    fin=autopad(body[-30:-2]+[label("L_fin")]+[ostore(i) for i in range(6)])
    fin=fin[[i for i,x in enumerate(fin) if x.text=="L_fin:"][0]:]
    e=check(st+body,"a")+check(body+body,"loop")
    assert e==0
    hdr=open("cdna_kernels/"+NAME+".s.ref").read().split("; @launch")[0]
    s=hdr+f"; @launch grid=(256,1,1) block=(512,1,1) lds={LDS}\n"
    s+=f""".amdgcn_target "amdgcn-amd-amdhsa--gfx950"
.text
.globl {NAME}_kernel
.p2align 8
.type {NAME}_kernel,@function
{NAME}_kernel:
"""
    f2=""
    if OPT["stamp"]:
        f2=text([wait(vm=0)]+stamp())+f"""    s_memrealtime s[74:75]
    s_waitcnt lgkmcnt(0)
    s_sub_u32 s74, s74, s72
    v_writelane_b32 v{STMP}, s74, 63
    s_lshl_b32 s70, s2, 3
    s_add_u32 s70, s70, s{sWV}
    s_lshl_b32 s70, s70, 8
    v_mbcnt_lo_u32_b32 v0, -1, 0
    v_mbcnt_hi_u32_b32 v0, -1, v0
    v_lshlrev_b32 v0, 2, v0
    v_add_u32 v0, s70, v0
    global_store_dword v0, v{STMP}, s[68:69]
    s_waitcnt vmcnt(0)
"""
    s+=text(st)+".p2align 6\n"+text(body)+text(fin)+f2+"L_exit:\n    s_endpgm\n"
    s+=f""".section .rodata,"a"
.p2align 6
.amdhsa_kernel {NAME}_kernel
  .amdhsa_next_free_vgpr 256
  .amdhsa_next_free_sgpr 80
  .amdhsa_accum_offset 256
  .amdhsa_group_segment_fixed_size 0
  .amdhsa_kernarg_size 64
  .amdhsa_user_sgpr_count 2
  .amdhsa_user_sgpr_kernarg_segment_ptr 1
  .amdhsa_system_sgpr_workgroup_id_x 1
.end_amdhsa_kernel
"""
    return s
if __name__=="__main__":
    out=sys.argv[1]
    for kv in sys.argv[2:]:
        k,_,val=kv.partition("=")
        OPT[k]=True if val=="" else (float(val) if "." in val else int(val))
    open(out,"w").write(build())
```
